```python
import torch

def _softmax(x, axis=-1):
    return torch.softmax(x, dim=axis)
def _gelu(x):
    return torch.nn.functional.gelu(x, approximate="tanh")
def _silu(x):
    return torch.nn.functional.silu(x)
def _sigmoid(x):
    return torch.sigmoid(x)
def _layernorm(x, axis=-1, eps=1e-5):
    m = x.mean(dim=axis, keepdim=True)
    v = x.var(dim=axis, keepdim=True, unbiased=False)
    return (x - m) / torch.sqrt(v + eps)
def _scatter_add(tgt, idx, src, axis=0):
    return tgt.clone().index_add_(axis, idx, src)
def _segment_sum(src, seg, n):
    out = torch.zeros((n,) + src.shape[1:], dtype=src.dtype)
    return out.index_add_(0, seg, src)
def _pad(x, pw):
    flat = tuple(v for pair in reversed(pw) for v in pair)
    return torch.nn.functional.pad(x, flat)

kernel_name = 'recurrent_scan__sliding_local_dilated__dense_activation_mish__prompt'

def setup_inputs():

    _w = (lambda a: (lambda t: t.to(torch.bfloat16) if t.is_floating_point() else t)(torch.as_tensor(a)))
    def _A_setup():
        B, S, D = 1, 2048, 448
        return {
            "x": _w((lambda *s: torch.randn(*s, dtype=torch.bfloat16) * 0.05)(B, S, D)),
            "wqkv": _w((lambda *s: torch.randn(*s, dtype=torch.bfloat16) * 0.2)(D, 3 * D)),
            "wo": _w((lambda *s: torch.randn(*s, dtype=torch.bfloat16) * 0.2)(D, D)),
        }
    _A_in = _A_setup()

    def _B_setup():
        B, S, D, F = 1, 2048, 448, 1792
        return {
            "x": _w((lambda *s: torch.randn(*s, dtype=torch.bfloat16) * 0.05)(B, S, D)),
            "w1": _w((lambda *s: torch.randn(*s, dtype=torch.bfloat16) * 0.8)(D, F) * (D ** -0.5)),
            "b1": _w((lambda *s: torch.randn(*s, dtype=torch.bfloat16) * 0.4)(F)),
            "w2": _w((lambda *s: torch.randn(*s, dtype=torch.bfloat16) * 0.1)(F, D) * (F ** -0.5)),
        }
    _B_in = _B_setup()

    return {
        "A_x": _A_in["x"],
        "A_wqkv": _A_in["wqkv"],
        "A_wo": _A_in["wo"],
        "B_x": _B_in["x"],
        "B_w1": _B_in["w1"],
        "B_b1": _B_in["b1"],
        "B_w2": _B_in["w2"],
    }

def reference(A_x, A_wqkv, A_wo, B_x, B_w1, B_b1, B_w2):
    def _A_ref(x, wqkv, wo):
        B, S, D = x.shape
        H = 16; Dh = D // H
        W, dil = 8, 2
        qkv = (lambda x, *d: x.permute(*d))((x @ wqkv).reshape(B, S, 3, H, Dh), 2, 0, 3, 1, 4)
        q, k, v = qkv[0], qkv[1], qkv[2]
        scale = Dh ** -0.5
        pos = torch.arange(S)
        off = torch.arange(W) * dil
        idx = pos[:, None] - off[None, :]
        mask = idx >= 0
        idx_c = torch.where(mask, idx, 0).reshape(-1)
        kg = k[:, :, idx_c, :].reshape(B, H, S, W, Dh)
        vg = v[:, :, idx_c, :].reshape(B, H, S, W, Dh)
        logits = torch.einsum("bhsd,bhswd->bhsw", q, kg) * scale
        logits = torch.where(mask[None, None, :, :], logits, -1e9)
        attn = _softmax(logits, axis=-1)
        o = torch.einsum("bhsw,bhswd->bhsd", attn, vg)
        return (lambda x, *d: x.permute(*d))(o, 0, 2, 1, 3).reshape(B, S, D) @ wo

    def _B_ref(x, w1, b1, w2):
        h = torch.einsum("bsd,df->bsf", x, w1) + b1
        sp = torch.log1p(torch.exp(-torch.abs(h))) + torch.where(h > 0, h, torch.zeros_like(h))
        act = h * torch.tanh(sp)
        return torch.einsum("bsf,fd->bsd", act, w2)

    x = A_x
    xn = _layernorm(x, axis=-1)
    s = _A_ref(xn, A_wqkv, A_wo)
    g = _silu(_B_ref(xn, B_w1, B_b1, B_w2))
    return x + s * g
```

```python
import re

REG_RE = re.compile(r'^(-|\|)?([vas])(\d+)\|?$')
RNG_RE = re.compile(r'^(-|\|)?([vas])\[(\d+):(\d+)\]\|?$')

TRANS = ('v_exp_f32', 'v_log_f32', 'v_rcp_f32', 'v_rsq_f32', 'v_sqrt_f32', 'v_sin_f32', 'v_cos_f32')


def regs_of(op):
    op = op.strip()
    m = REG_RE.match(op)
    if m:
        return [(m.group(2), int(m.group(3)))]
    m = RNG_RE.match(op)
    if m:
        return [(m.group(2), i) for i in range(int(m.group(3)), int(m.group(4)) + 1)]
    if op == 'vcc':
        return [('s', 'vcc_lo'), ('s', 'vcc_hi')]
    if op in ('vcc_lo', 'vcc_hi', 'm0', 'exec_lo', 'exec_hi', 'scc'):
        return [('s', op)]
    if op == 'exec':
        return [('s', 'exec_lo'), ('s', 'exec_hi')]
    return []


class Ins:
    __slots__ = ('text', 'mn', 'ops', 'mods', 'defs', 'uses', 'kind', 'tag', 'passes', 'srcc', 'srcab', 'dpp', 'note')

    def __init__(self, text, tag=None):
        self.text = text
        self.tag = tag
        self.note = None
        t = text.split(';')[0].strip()
        parts = t.split(None, 1)
        self.mn = parts[0] if parts else ''
        rest = parts[1] if len(parts) > 1 else ''
        ops = []
        depth = 0
        cur = ''
        for ch in rest:
            if ch == '[' or ch == '(':
                depth += 1
            if ch == ']' or ch == ')':
                depth -= 1
            if ch == ',' and depth == 0:
                ops.append(cur.strip())
                cur = ''
            else:
                cur += ch
        if cur.strip():
            ops.append(cur.strip())
        mods = ''
        if ops:
            last = ops[-1].split(None, 1)
            if len(last) > 1 and not self.mn.startswith('s_waitcnt'):
                ops[-1] = last[0]
                mods = last[1]
        self.ops = ops
        self.mods = mods
        self.passes = 0
        self.srcc = []
        self.srcab = []
        self.dpp = ('row_' in mods) or ('quad_perm' in mods) or ('wave_' in mods) or ('_dpp' in self.mn)
        self.classify()

    def classify(self):
        mn, ops = self.mn, self.ops
        R = lambda i: regs_of(ops[i]) if i < len(ops) else []
        allr = lambda lo: [r for i in range(lo, len(ops)) for r in regs_of(ops[i])]
        defs, uses = [], []
        kind = 'other'
        if mn.endswith(':') or mn == '' or mn.startswith('.'):
            kind = 'label' if mn.endswith(':') else 'dir'
        elif mn.startswith('v_mfma'):
            kind = 'mfma'
            defs = R(0)
            self.srcab = R(1) + R(2)
            self.srcc = R(3)
            uses = self.srcab + self.srcc
            self.passes = 8 if '32x32' in mn else 4
        elif mn.startswith('ds_'):
            kind = 'ds'
            if mn.startswith('ds_read') or mn.startswith('ds_bpermute') or mn.startswith('ds_permute') or mn.startswith('ds_swizzle'):
                defs = R(0)
                uses = allr(1)
            else:
                uses = allr(0)
        elif mn.startswith('buffer_') or mn.startswith('global_'):
            kind = 'vmem'
            is_lds = bool(re.search(r'(^|\s)lds(\s|$)', self.mods))
            if mn.startswith('buffer_load') and is_lds:
                uses = allr(0) + [('s', 'm0')]
            elif 'load' in mn:
                defs = R(0)
                uses = allr(1)
            elif mn in ('buffer_wbl2', 'buffer_inv'):
                pass
            elif 'atomic' in mn and re.search(r'(^|\s)(sc0|glc)(\s|$)', self.mods):
                defs = R(0)
                uses = allr(0)
            else:
                uses = allr(0)
        elif mn.startswith('s_load') or mn.startswith('s_buffer_load') or mn in ('s_memtime', 's_memrealtime'):
            kind = 'smem'
            defs = R(0)
            uses = allr(1)
        elif mn.startswith('s_waitcnt'):
            kind = 'wait'
        elif mn == 's_nop':
            kind = 'nop'
        elif mn == 's_barrier':
            kind = 'barrier'
        elif mn.startswith('s_cbranch') or mn in ('s_branch', 's_endpgm', 's_setpc_b64', 's_swappc_b64'):
            kind = 'branch'
            if 'vcc' in mn:
                uses = regs_of('vcc')
            if 'exec' in mn:
                uses = regs_of('exec')
            if 'scc' in mn:
                uses = [('s', 'scc')]
        elif mn.startswith('s_cmp') or mn.startswith('s_bitcmp'):
            kind = 'salu'
            uses = allr(0)
            defs = [('s', 'scc')]
        elif mn.startswith('s_'):
            kind = 'salu'
            if mn in ('s_setprio', 's_sleep', 's_setreg_b32', 's_setreg_imm32_b32', 's_sendmsg', 's_inst_prefetch'):
                uses = allr(0)
            else:
                defs = R(0)
                uses = allr(1)
                if 'saveexec' in mn:
                    defs = defs + regs_of('exec')
                    uses = uses + regs_of('exec')
                if mn.startswith(('s_add', 's_sub', 's_and', 's_or', 's_xor', 's_lshl', 's_lshr', 's_ashr', 's_min', 's_max', 's_bfe', 's_andn2', 's_orn2', 's_not')):
                    defs = defs + [('s', 'scc')]
                if mn.startswith(('s_addc', 's_subb', 's_cselect', 's_cmov')):
                    uses = uses + [('s', 'scc')]
                if mn.startswith('s_cmov'):
                    uses = uses + R(0)
        elif mn.startswith('v_'):
            kind = 'valu'
            if mn.startswith('v_cmp'):
                defs = R(0)
                uses = allr(1)
                if mn.startswith('v_cmpx'):
                    defs = defs + regs_of('exec')
            elif mn.startswith(('v_permlane16_swap', 'v_permlane32_swap', 'v_swap_b32')):
                defs = R(0) + R(1)
                uses = R(0) + R(1)
            elif mn.startswith(('v_fmac', 'v_dot2c', 'v_mac', 'v_writelane')):
                defs = R(0)
                uses = allr(0)
            elif mn.startswith(('v_add_co', 'v_sub_co', 'v_addc_co', 'v_subb_co')):
                defs = R(0) + R(1)
                uses = allr(2)
            else:
                defs = R(0)
                uses = allr(1)
                if self.dpp:
                    uses = uses + R(0)
        self.kind = kind
        self.defs = defs
        self.uses = uses

    @property
    def is_trans(self):
        return self.mn.replace('_e32', '').replace('_e64', '') in TRANS

    @property
    def is_dot(self):
        return self.mn.startswith('v_dot')


class Prog:
    def __init__(self):
        self.ins = []

    def __call__(self, text, tag=None):
        for line in text.split('\n'):
            line = line.strip()
            if not line or line.startswith(';'):
                continue
            self.ins.append(Ins(line, tag))
        return self

    def add(self, ins):
        self.ins.append(ins)

    def extend(self, other):
        self.ins.extend(other.ins if isinstance(other, Prog) else other)

    def label(self, name):
        self.ins.append(Ins(name + ':'))

    def wait_vm(self, tag):
        i = Ins('s_nop 0')
        i.kind = 'waitvm'
        i.tag = tag
        self.ins.append(i)

    def wait_lgkm_all(self):
        self('s_waitcnt lgkmcnt(0)')

    def comment(self, text):
        i = Ins('.comment')
        i.text = '; ' + text
        i.kind = 'dir'
        self.ins.append(i)


def interleave(main, filler, start=0, end=None, every=None):
    main = list(main)
    filler = list(filler)
    if end is None:
        end = len(main)
    n = max(end - start, 1)
    out = []
    fi = 0
    for i, m in enumerate(main):
        out.append(m)
        if start <= i < end:
            want = (len(filler) * (i - start + 1) + n - 1) // n
            while fi < want and fi < len(filler):
                out.append(filler[fi])
                fi += 1
    while fi < len(filler):
        out.append(filler[fi])
        fi += 1
    return out


def flatten(x):
    out = []
    for e in x:
        if isinstance(e, (list, tuple)):
            out.extend(flatten(e))
        elif isinstance(e, Prog):
            out.extend(e.ins)
        else:
            out.append(e)
    return out


def _parse_wait(text):
    vm = re.search(r'vmcnt\((\d+)\)', text)
    lg = re.search(r'lgkmcnt\((\d+)\)', text)
    return (int(vm.group(1)) if vm else None, int(lg.group(1)) if lg else None)


def insert_waits(ins):
    out = []
    lg = []
    vm = []

    def emit_wait(vmn, lgn):
        parts = []
        if vmn is not None:
            parts.append(f'vmcnt({min(vmn, 63)})')
            del vm[:max(0, len(vm) - min(vmn, 63))]
        if lgn is not None:
            parts.append(f'lgkmcnt({min(lgn, 15)})')
            del lg[:max(0, len(lg) - min(lgn, 15))]
        if parts:
            out.append(Ins('s_waitcnt ' + ' '.join(parts)))

    for x in ins:
        if x.kind == 'waitvm':
            tags = x.tag if isinstance(x.tag, (list, tuple, set)) else [x.tag]
            idx = -1
            for k, (d, t) in enumerate(vm):
                if t in tags:
                    idx = k
            if idx >= 0:
                emit_wait(len(vm) - 1 - idx, None)
            continue
        if x.kind == 'wait':
            v, l = _parse_wait(x.text)
            if v is not None:
                del vm[:max(0, len(vm) - v)]
            if l is not None:
                del lg[:max(0, len(lg) - l)]
            out.append(x)
            continue
        if x.kind in ('label', 'branch'):
            if x.mn != 's_endpgm':
                pend_l = any(d for d, s in lg)
                pend_v = any(d for d, t in vm)
                if x.kind == 'branch' and (pend_l or pend_v):
                    emit_wait(0 if pend_v else None, 0 if pend_l else None)
            out.append(x)
            if x.kind == 'label' or x.mn in ('s_branch', 's_endpgm'):
                pass
            continue
        touched = set(x.defs) | set(x.uses)
        need_l = None
        for k, (d, smem) in enumerate(lg):
            if d & touched:
                n = 0 if smem or any(s for _, s in lg) else len(lg) - 1 - k
                need_l = n if need_l is None else min(need_l, n)
        need_v = None
        for k, (d, t) in enumerate(vm):
            if d & touched:
                n = len(vm) - 1 - k
                need_v = n if need_v is None else min(need_v, n)
        if need_l is not None or need_v is not None:
            emit_wait(need_v, need_l)
        out.append(x)
        if x.kind == 'ds':
            lg.append((set(x.defs), False))
            if len(lg) > 64:
                del lg[0]
        elif x.kind == 'smem':
            lg.append((set(x.defs), True))
        elif x.kind == 'vmem' and x.mn not in ('buffer_inv',):
            vm.append((set(x.defs), x.tag))
    return out


def _states(x):
    if x.kind == 'nop':
        return int(x.ops[0]) + 1
    if x.kind in ('dir', 'label'):
        return 0
    return 1


def insert_nops(ins):
    out = []
    hist = []
    pos = 0
    WIN = 24

    def need(prod, cons):
        n = 0
        pd = set(prod.defs)
        cu = set(cons.uses)
        cd = set(cons.defs)
        pv = {r for r in pd if r[0] in 'va'}
        if prod.kind == 'mfma':
            p8 = prod.passes == 8
            if cons.kind == 'mfma':
                c = set(cons.srcc)
                if pv & c:
                    same = (cons.srcc == prod.defs) and cons.passes == prod.passes
                    if not same:
                        n = max(n, 10 if p8 else 6)
                if pv & set(cons.srcab):
                    n = max(n, 12 if p8 else 8)
                if (pv & cd) and not (pv & c):
                    n = max(n, 10 if p8 else 6)
            elif cons.kind in ('valu', 'vmem', 'ds'):
                if pv & (cu | cd):
                    n = max(n, 12 if p8 else 8)
            if cons.kind == 'valu' and set(prod.srcc) & cd:
                n = max(n, 7 if p8 else 3)
        elif prod.kind == 'valu':
            if prod.is_dot and pv & (cu | cd):
                if cons.mn == prod.mn:
                    srcs = set()
                    for i in range(1, len(cons.ops)):
                        if cons.mn.startswith('v_dot2c') or i < 3:
                            srcs |= set(regs_of(cons.ops[i]))
                    if pv & srcs:
                        n = max(n, 3)
                else:
                    n = max(n, 3)
            if cons.kind == 'mfma' and pv & cu:
                n = max(n, 2)
            if cons.kind == 'valu':
                if prod.is_trans and not cons.is_trans and pv & cu:
                    n = max(n, 1)
                if cons.dpp and pv & cu:
                    n = max(n, 2)
                if cons.mn.startswith('v_permlane') and pv & cu:
                    n = max(n, 2)
                if cons.mn.startswith(('v_readlane', 'v_readfirstlane')) and pv & cu:
                    n = max(n, 1)
            ps = {r for r in pd if r[0] == 's'}
            if ps:
                if cons.kind == 'valu' and ps & cu:
                    n = max(n, 4 if cons.mn.startswith(('v_readlane', 'v_writelane')) else 2)
                if cons.kind == 'vmem' and ps & cu:
                    n = max(n, 5)
                ex = {('s', 'exec_lo'), ('s', 'exec_hi')}
                if ps & ex:
                    if cons.kind == 'mfma' or cons.mn.startswith('v_permlane') or cons.mn.startswith('v_read'):
                        n = max(n, 4)
                    if cons.dpp:
                        n = max(n, 5)
        elif prod.kind == 'salu':
            if ('s', 'm0') in pd and cons.kind == 'vmem' and ('s', 'm0') in cu:
                n = max(n, 1)
        elif prod.kind == 'vmem':
            if 'store' in prod.mn and ('x4' in prod.mn or 'x3' in prod.mn):
                data = set(regs_of(prod.ops[0])) if prod.mn.startswith('buffer') else set(regs_of(prod.ops[1]))
                if data & cd:
                    n = max(n, 2 if cons.kind == 'valu' else 1)
        return n

    for x in ins:
        if x.kind in ('dir',):
            out.append(x)
            continue
        if x.kind == 'label':
            out.append(x)
            continue
        req = 0
        for (p, ppos) in hist:
            d = pos - ppos - 1
            r = need(p, x)
            if r > d:
                req = max(req, r - d)
        while req > 0:
            k = min(req, 16)
            out.append(Ins(f's_nop {k - 1}'))
            pos += k
            req -= k
        out.append(x)
        hist.append((x, pos))
        pos += _states(x)
        hist = [(p, pp) for (p, pp) in hist if pos - pp <= WIN]
    return out


def finalize(prog):
    ins = flatten(prog.ins if isinstance(prog, Prog) else prog)
    ins = insert_waits(ins)
    ins = insert_nops(ins)
    return ins


def render(ins):
    lines = []
    for x in ins:
        if x.kind == 'label':
            lines.append(x.text)
        else:
            lines.append('\t' + x.text)
    return '\n'.join(lines) + '\n'


def kernel_block(name, body_text):
    return f""".globl {name}
.p2align 8
.type {name},@function
{name}:
{body_text}
"""


def kernel_desc(name, vgpr=512, accum=256, sgpr=102):
    return f""".amdhsa_kernel {name}
  .amdhsa_next_free_vgpr {vgpr}
  .amdhsa_next_free_sgpr {sgpr}
  .amdhsa_accum_offset {accum}
  .amdhsa_group_segment_fixed_size 0
  .amdhsa_kernarg_size 80
  .amdhsa_user_sgpr_count 2
  .amdhsa_user_sgpr_kernarg_segment_ptr 1
  .amdhsa_system_sgpr_workgroup_id_x 1
.end_amdhsa_kernel
"""
```

```python
from common import *

XROWS = 145
XSLOT = XROWS * 128
XBASE = 0
WBASE = 3 * XSLOT
WSLOT = 3 * 64 * 128
MISC = WBASE + 3 * WSLOT
STAT = MISC
LDS_END = STAT + 4 * 1280

BIG = -1.0e30


def attn_role(store_mods="sc1"):
    p = Prog()
    V = VAlloc(1, 256)
    A = VAlloc(0, 256, 'a')
    sHH, sP, sXb, sXd, sXhd, sWb, sWd, sT, sOb = 40, 41, 42, 43, 44, 45, 46, 47, 48
    sMW0, sMW1 = 60, 62
    sM1, sM2, sM3 = 64, 66, 68
    sInvD, sBig0 = 70, 71
    p(f"s_and_b32 s{sHH}, s{S_WAVE}, 1")
    p(f"s_lshr_b32 s{sP}, s{S_WAVE}, 1")
    p(f"s_lshl_b32 s{sT}, s{S_MT}, 7")
    p(f"s_add_u32 s{sT}, s{sT}, s{sP}")
    p(f"s_lshl_b32 s{sXb}, s{sHH}, 6")
    p(f"s_add_u32 s{sXb}, s{sXb}, s{sT}")
    p(f"s_mul_i32 s{sXb}, s{sXb}, 896")
    p(f"s_mul_i32 s{sXhd}, s{sP}, {72 * 128}")
    p(f"s_lshl_b32 s{sXd}, s{sHH}, 12")
    p(f"s_add_u32 s{sXd}, s{sXd}, s{sXhd}")
    p(f"s_add_u32 s{sXd}, s{sXd}, 1024")
    p(f"s_lshl_b32 s49, s{sHH}, 9")
    p(f"s_add_u32 s{sXhd}, s{sXhd}, s49")
    p(f"s_mul_i32 s{sWb}, s{S_WAVE}, {16 * 2688}")
    p(f"s_lshl_b32 s{sWd}, s{S_WAVE}, 11")

    vR, vPos, vT0, vT1, vT2, vT3 = V.get(), V.get(), V.get(), V.get(), V.get(), V.get()
    vXb = [V.get(), V.get()]
    vXh = V.get()
    vW = [V.get(), V.get()]
    p(f"v_lshrrev_b32 v{vR}, 3, v0")
    p(f"v_and_b32 v{vPos}, 7, v0")
    p(f"v_lshrrev_b32 v{vT0}, 1, v{vR}")
    p(f"s_add_u32 s49, s{sP}, 1")
    p(f"s_and_b32 s49, s49, 1")
    p(f"s_lshl_b32 s49, s49, 2")
    p(f"v_add_u32 v{vT1}, s49, v{vT0}")
    p(f"v_xor_b32 v{vT1}, v{vT1}, v{vPos}")
    p(f"v_lshlrev_b32 v{vT1}, 4, v{vT1}")
    p(f"v_mul_u32_u24 v{vT2}, 1792, v{vR}")
    p(f"v_add_u32 v{vXb[0]}, v{vT2}, v{vT1}")
    p(f"v_xor_b32 v{vT1}, 64, v{vT1}")
    p(f"v_add_u32 v{vXb[1]}, v{vT2}, v{vT1}")
    p(f"s_lshl_b32 s49, s{sP}, 2")
    p(f"s_lshl_b32 s50, s{sHH}, 1")
    p(f"s_add_u32 s49, s49, s50")
    p(f"v_add_u32 v{vT1}, s49, v{vT0}")
    p(f"v_and_b32 v{vT1}, 7, v{vT1}")
    p(f"v_xor_b32 v{vT1}, v{vT1}, v{vPos}")
    p(f"v_lshlrev_b32 v{vT1}, 4, v{vT1}")
    p(f"v_add_u32 v{vT1}, v{vT2}, v{vT1}")
    p(f"s_lshl_b32 s49, s{S_MT}, 7")
    p(f"s_add_u32 s49, s49, s{sP}")
    p(f"s_lshl_b32 s50, s{sHH}, 3")
    p(f"s_add_u32 s49, s49, s50")
    p(f"s_sub_u32 s49, s49, 16")
    p(f"s_mul_i32 s49, s49, 896")
    p(f"v_add_u32 v{vXh}, s49, v{vT1}")
    p(f"v_and_b32 v{vT0}, 1, v{vT0}")
    p(f"v_lshlrev_b32 v{vT0}, 1, v{vT0}")
    p(f"v_xor_b32 v{vT0}, v{vT0}, v{vPos}")
    p(f"v_mul_u32_u24 v{vT2}, 2688, v{vR}")
    p(f"s_mul_i32 s49, s{S_CG}, 112")
    p(f"v_add_u32 v{vT2}, s49, v{vT2}")
    p(f"v_min_u32 v{vT1}, 6, v{vT0}")
    p(f"v_lshl_add_u32 v{vW[0]}, v{vT1}, 4, v{vT2}")
    p(f"v_xor_b32 v{vT0}, 4, v{vT0}")
    p(f"v_min_u32 v{vT1}, 6, v{vT0}")
    p(f"v_lshl_add_u32 v{vW[1]}, v{vT1}, 4, v{vT2}")
    set_mask(p, sMW0, mask64(lambda l: ((l & 7) ^ (2 * (((l >> 3) >> 1) & 1))) != 7))
    set_mask(p, sMW1, mask64(lambda l: ((l & 7) ^ (2 * ((((l >> 3) >> 1) & 1) | 2))) != 7))

    def dma_groups(c):
        slot = c % 3
        gs = []
        for n in range(4):
            g = Prog()
            g(f"s_add_u32 s{sT}, s{sXb}, {14336 * n + 128 * c}")
            g(f"s_add_u32 m0, s{sXd}, {XBASE + slot * XSLOT + n * 1024}")
            g(f"buffer_load_dwordx4 v{vXb[n & 1]}, s[{SRD_X}:{SRD_X + 3}], s{sT} offen lds", tag=f"c{c}")
            gs.append(g.ins)
        g = Prog()
        g(f"s_mov_b32 s{sT}, {128 * c}")
        g(f"s_add_u32 m0, s{sXhd}, {XBASE + slot * XSLOT}")
        g("s_mov_b32 exec_hi, 0")
        g(f"buffer_load_dwordx4 v{vXh}, s[{SRD_X}:{SRD_X + 3}], s{sT} offen lds", tag=f"c{c}")
        g("s_mov_b32 exec_hi, -1")
        gs.append(g.ins)
        for i in range(2):
            for sec in range(3):
                g = Prog()
                g(f"s_add_u32 s{sT}, s{sWb}, {(64 * c + 8 * i) * 2688 + 896 * sec}")
                g(f"s_add_u32 m0, s{sWd}, {WBASE + slot * WSLOT + sec * 8192 + i * 1024}")
                g(f"s_mov_b64 exec, s[{(sMW0, sMW1)[i]}:{(sMW0, sMW1)[i] + 1}]")
                g(f"buffer_load_dwordx4 v{vW[i]}, s[{SRD_W}:{SRD_W + 3}], s{sT} offen lds", tag=f"c{c}")
                g("s_mov_b64 exec, -1")
                gs.append(g.ins)
        return gs

    for c in range(3):
        for g in dma_groups(c):
            p.extend(g)

    vC = V.get(4, 4)
    vOne = V.get(4, 4)
    for i in range(4):
        p(f"v_mov_b32 v{vC + i}, 0")
        p(f"v_mov_b32 v{vOne + i}, 0x3f803f80")
    p(f"v_lshrrev_b32 v{vT0}, 1, v0\nv_and_b32 v{vT0}, 1, v{vT0}")
    p(f"v_lshrrev_b32 v{vT1}, 3, v0\nv_and_b32 v{vT1}, 1, v{vT1}")
    p(f"v_lshl_or_b32 v{vT0}, v{vT1}, 1, v{vT0}")
    p(f"v_lshlrev_b32 v{vT0}, 1, v{vT0}")
    p(f"v_xor_b32 v{vT0}, 7, v{vT0}")
    p(f"v_lshlrev_b32 v{vT0}, 4, v{vT0}")
    p(f"v_lshl_add_u32 v{vT0}, v0, 7, v{vT0}")
    p(f"v_add_u32 v{vT0}, {WBASE}, v{vT0}")
    p(f"v_add_u32 v{vT1}, {2 * WSLOT}, v{vT0}")
    for slot in range(3):
        for sec in range(3):
            src = vOne if sec == 2 else vC
            if slot < 2:
                p(f"ds_write_b128 v{vT0}, v[{src}:{src + 3}] offset:{slot * WSLOT + sec * 8192}")
            else:
                p(f"ds_write_b128 v{vT1}, v[{src}:{src + 3}] offset:{sec * 8192}")
    p(f"v_and_b32 v{vT2}, 7, v0\nv_lshlrev_b32 v{vT2}, 4, v{vT2}")
    for slot in range(3):
        p(f"ds_write_b128 v{vT2}, v[{vOne}:{vOne + 3}] offset:{XBASE + slot * XSLOT + 144 * 128}")

    vJ, vG = V.get(), V.get()
    vXA = [V.get(), V.get()]
    vXH = [V.get(), V.get()]
    vWA = [V.get(), V.get()]
    vWA2 = [V.get(), V.get()]
    p(f"v_and_b32 v{vJ}, 15, v0")
    p(f"v_lshrrev_b32 v{vG}, 4, v0")
    p(f"s_lshl_b32 s49, s{sP}, 2")
    p(f"s_add_u32 s50, s49, 4")
    p(f"v_lshrrev_b32 v{vT0}, 1, v{vJ}")
    p(f"v_add_u32 v{vT1}, s50, v{vT0}")
    p(f"v_and_b32 v{vT1}, 7, v{vT1}")
    p(f"v_xor_b32 v{vT1}, v{vT1}, v{vG}")
    p(f"v_lshlrev_b32 v{vT1}, 4, v{vT1}")
    p(f"s_mul_i32 s51, s{sP}, {72 * 128}")
    p(f"s_add_u32 s52, s51, {8 * 128}")
    p(f"v_lshl_add_u32 v{vT2}, v{vJ}, 7, s52")
    p(f"v_add_u32 v{vXA[0]}, v{vT2}, v{vT1}")
    p(f"v_xor_b32 v{vT1}, 64, v{vT1}")
    p(f"v_add_u32 v{vXA[1]}, v{vT2}, v{vT1}")
    p(f"v_subrev_u32 v{vT0}, 8, v{vJ}")
    p(f"v_lshrrev_b32 v{vT1}, 1, v{vT0}")
    p(f"v_add_u32 v{vT1}, s49, v{vT1}")
    p(f"v_and_b32 v{vT1}, 7, v{vT1}")
    p(f"v_xor_b32 v{vT1}, v{vT1}, v{vG}")
    p(f"v_lshlrev_b32 v{vT1}, 4, v{vT1}")
    p(f"v_lshl_add_u32 v{vT2}, v{vT0}, 7, s51")
    p(f"v_mov_b32 v{vT3}, {144 * 128}")
    p(f"v_cmp_gt_u32 vcc, 8, v{vJ}")
    p(f"v_cndmask_b32 v{vT2}, v{vT2}, v{vT3}, vcc")
    p(f"v_add_u32 v{vXH[0]}, v{vT2}, v{vT1}")
    p(f"v_xor_b32 v{vT1}, 64, v{vT1}")
    p(f"v_add_u32 v{vXH[1]}, v{vT2}, v{vT1}")
    vQ, vI3 = vT3, V.get()
    p(f"v_lshrrev_b32 v{vQ}, 2, v{vJ}")
    p(f"v_and_b32 v{vI3}, 3, v{vJ}")
    p(f"v_lshrrev_b32 v{vT0}, 1, v{vQ}")
    p(f"v_and_b32 v{vT1}, 1, v{vG}")
    p(f"v_lshl_or_b32 v{vT0}, v{vT1}, 1, v{vT0}")
    p(f"v_lshlrev_b32 v{vT0}, 5, v{vT0}")
    p(f"v_lshl_add_u32 v{vT1}, v{vG}, 3, v{vQ}")
    p(f"v_lshlrev_b32 v{vT1}, 7, v{vT1}")
    p(f"v_add_u32 v{vT1}, {WBASE}, v{vT1}")
    p(f"s_mul_i32 s49, s{sHH}, 56")
    for blk in range(2):
        p(f"s_add_u32 s50, s49, {32 * blk}")
        p(f"v_lshl_add_u32 v{vT2}, v{vI3}, 3, s50")
        if blk == 1:
            p(f"s_lshl_b32 s51, s{sHH}, 3")
            p(f"s_sub_u32 s51, {7 * 16 + 8}, s51")
            p(f"v_mov_b32 v{vWA[1]}, s51")
            p(f"v_cmp_eq_u32 vcc, 3, v{vI3}")
            p(f"v_cndmask_b32 v{vT2}, v{vT2}, v{vWA[1]}, vcc")
        p(f"v_xor_b32 v{vT2}, v{vT2}, v{vT0}")
        p(f"v_add_u32 v{vWA[blk]}, v{vT1}, v{vT2}")
        p(f"v_add_u32 v{vWA2[blk]}, {2 * WSLOT}, v{vWA[blk]}")

    Q = [[V.get(4, 4) for blk in range(2)] for b in range(5)]
    K = [[V.get(4, 4) for blk in range(2)] for b in range(5)]
    Vv = [[V.get(4, 4) for blk in range(2)] for b in range(5)]
    G = [V.get(4, 4) for b in range(5)]
    xf = [[A.get(4, 4) for b in range(5)] for buf in range(2)]
    wf = [[A.get(4, 4) for i in range(6)] for buf in range(2)]

    def reads(c, s):
        buf = s
        slot = c % 3
        r = []
        xo = XBASE + slot * XSLOT
        r.append(Ins(f"ds_read_b128 a[{xf[buf][0]}:{xf[buf][0] + 3}], v{vXH[s]} offset:{xo}"))
        def wread(i):
            sec, blk = i >> 1, i & 1
            va = vWA2[blk] if slot == 2 else vWA[blk]
            off = (0 if slot == 2 else slot * WSLOT) + sec * 8192 + s * 4096
            d = wf[buf][i]
            return [Ins(f"ds_read_b64_tr_b16 a[{d}:{d + 1}], v{va} offset:{off}"),
                    Ins(f"ds_read_b64_tr_b16 a[{d + 2}:{d + 3}], v{va} offset:{off + 512}")]
        r += wread(0)
        for b in range(1, 5):
            r.append(Ins(f"ds_read_b128 a[{xf[buf][b]}:{xf[buf][b] + 3}], v{vXA[s]} offset:{xo + 2048 * (b - 1)}"))
        for i in range(1, 6):
            r += wread(i)
        return r

    def mfmas(c, s):
        buf = s
        first = (c == 0 and s == 0)
        m = []

        def mm(d, a, b):
            cc = "0" if first else f"v[{d}:{d + 3}]"
            m.append(Ins(f"v_mfma_f32_16x16x32_bf16 v[{d}:{d + 3}], a[{a}:{a + 3}], a[{b}:{b + 3}], {cc}"))
        for blk in range(2):
            for b in range(5):
                mm(Q[b][blk], wf[buf][blk], xf[buf][b])
        for b in range(5):
            mm(G[b], xf[buf][b], xf[buf][b])
        for blk in range(2):
            for b in range(5):
                mm(K[b][blk], wf[buf][2 + blk], xf[buf][b])
        for blk in range(2):
            for b in range(5):
                mm(Vv[b][blk], xf[buf][b], wf[buf][4 + blk])
        return m

    p.wait_vm("c0")
    p("s_waitcnt lgkmcnt(0)")
    p("s_barrier")
    p.extend(reads(0, 0))
    for c in range(7):
        p.extend(interleave(mfmas(c, 0), reads(c, 1), 0, 24))
        if c < 6:
            p.wait_vm(f"c{c + 1}")
            p("s_waitcnt lgkmcnt(0)")
            p("s_barrier")
            fill = reads(c + 1, 0)
            if c + 3 < 7:
                dg = dma_groups(c + 3)
                mix = []
                k = 0
                for i, r in enumerate(fill):
                    mix.append(r)
                    while k < len(dg) and k < (i + 1) * len(dg) // len(fill):
                        mix.append(dg[k])
                        k += 1
                mix += dg[k:]
                fill = mix
            p.extend(flatten(interleave(mfmas(c, 1), fill, 0, 33)))
        else:
            p.extend(mfmas(c, 1))

    set_mask(p, sM1, mask64(lambda l: (l & 3) == 1))
    set_mask(p, sM2, mask64(lambda l: (l & 3) == 2))
    set_mask(p, sM3, mask64(lambda l: (l & 3) == 3))
    p(f"s_mov_b32 s{sInvD}, {fx(1.0 / 448.0)}")
    vSrow, vSj = vXA[0], vXA[1]
    p(f"s_mul_i32 s49, s{S_WAVE}, 1280")
    p(f"s_add_u32 s49, s49, {STAT}")
    p(f"v_lshl_add_u32 v{vSrow}, v{vG}, 4, s49")
    p(f"v_lshl_add_u32 v{vSj}, v{vJ}, 2, s49")
    dsel = [V.get() for b in range(5)]
    for b in range(5):
        p(f"v_cndmask_b32 v{dsel[b]}, v{G[b]}, v{G[b] + 1}, s[{sM1}:{sM1 + 1}]")
    for b in range(5):
        p(f"v_cndmask_b32 v{dsel[b]}, v{dsel[b]}, v{G[b] + 2}, s[{sM2}:{sM2 + 1}]")
    for b in range(5):
        p(f"v_cndmask_b32 v{dsel[b]}, v{dsel[b]}, v{G[b] + 3}, s[{sM3}:{sM3 + 1}]")
    set_exec(p, mask64(lambda l: (l & 15) == 12))
    for b in range(5):
        p(f"ds_write_b128 v{vSrow}, v[{Vv[b][1]}:{Vv[b][1] + 3}] offset:{64 * b}")
    set_exec(p, mask64(lambda l: ((l & 15) >> 2) == (l >> 4)))
    for b in range(5):
        p(f"ds_write_b32 v{vSj}, v{dsel[b]} offset:{320 + 64 * b}")
    p("s_mov_b64 exec, -1")
    nm = [V.get() for b in range(5)]
    rs = [V.get() for b in range(5)]
    for b in range(5):
        p(f"ds_read_b32 v{nm[b]}, v{vSj} offset:{64 * b}")
        p(f"ds_read_b32 v{rs[b]}, v{vSj} offset:{320 + 64 * b}")
    csv = [V.get(), V.get()]
    for blk in range(2):
        p(f"v_mov_b32 v{csv[blk]}, v{Vv[0][blk]}")
        p(f"v_mov_b32 v{dsel[blk]}, v{Vv[0][blk]}")
    for blk in range(2):
        p(f"v_permlane32_swap_b32 v{csv[blk]}, v{dsel[blk]}")
    for b in range(5):
        p(f"v_mul_f32 v{nm[b]}, {fx(-1.0 / 448.0)}, v{nm[b]}")
    for b in range(5):
        p(f"v_mul_f32 v{dsel[b]}, v{nm[b]}, v{nm[b]}")
    for b in range(5):
        p(f"v_fma_f32 v{rs[b]}, v{rs[b]}, s{sInvD}, -v{dsel[b]}")
    for b in range(5):
        p(f"v_max_f32 v{rs[b]}, 0, v{rs[b]}")
    for b in range(5):
        p(f"v_add_f32 v{rs[b]}, {fx(1e-5)}, v{rs[b]}")
    for b in range(5):
        p(f"v_rsq_f32 v{rs[b]}, v{rs[b]}")
    p("s_mov_b32 exec_hi, 0\ns_mov_b32 exec_lo, 0xffff")
    for b in range(5):
        p(f"ds_write_b32 v{vSj}, v{nm[b]} offset:{640 + 64 * b}")
        p(f"ds_write_b32 v{vSj}, v{rs[b]} offset:{960 + 64 * b}")
    p("s_mov_b64 exec, -1")
    nmrow = [G[b] for b in range(5)]
    rsrow = [V.get(4, 4) for b in range(5)]
    for b in range(5):
        p(f"ds_read_b128 v[{nmrow[b]}:{nmrow[b] + 3}], v{vSrow} offset:{640 + 64 * b}")
        p(f"ds_read_b128 v[{rsrow[b]}:{rsrow[b] + 3}], v{vSrow} offset:{960 + 64 * b}")

    DPP = "row_newbcast:0 row_mask:0xf bank_mask:0xf"
    for b in range(1, 5):
        for blk in range(2):
            for r in range(4):
                p(f"v_fmac_f32_dpp v{Q[b][blk] + r}, v{Q[0][blk] + r}, v{nm[b]} {DPP}")
    for b in (1, 2, 3, 4, 0):
        for blk in range(2):
            for r in range(4):
                p(f"v_fmac_f32_dpp v{K[b][blk] + r}, v{K[0][blk] + r}, v{nm[b]} {DPP}")

    def pack(dst, a0, a1):
        p(f"v_cvt_pk_bf16_f32 v{dst}, v{a0}, v{a0 + 1}")
        p(f"v_cvt_pk_bf16_f32 v{dst + 1}, v{a0 + 2}, v{a0 + 3}")
        p(f"v_cvt_pk_bf16_f32 v{dst + 2}, v{a1}, v{a1 + 1}")
        p(f"v_cvt_pk_bf16_f32 v{dst + 3}, v{a1 + 2}, v{a1 + 3}")
    for b in range(1, 5):
        pack(Q[b][0], Q[b][0], Q[b][1])
    for b in range(5):
        pack(K[b][0], K[b][0], K[b][1])
    Sp = [None] + [Q[b][1] for b in range(1, 5)]
    Sc = [None] + [K[b][1] for b in range(1, 5)]
    for b in range(1, 5):
        p(f"v_mfma_f32_16x16x32_bf16 v[{Sp[b]}:{Sp[b] + 3}], v[{K[b - 1][0]}:{K[b - 1][0] + 3}], v[{Q[b][0]}:{Q[b][0] + 3}], 0")
        p(f"v_mfma_f32_16x16x32_bf16 v[{Sc[b]}:{Sc[b] + 3}], v[{K[b][0]}:{K[b][0] + 3}], v[{Q[b][0]}:{Q[b][0] + 3}], 0")

    for b in range(5):
        for blk in range(2):
            for r in range(4):
                p(f"v_fmac_f32 v{Vv[b][blk] + r}, v{nmrow[b] + r}, v{csv[blk]}")
    Vbf = [V.get(10, 2), V.get(10, 2)]
    for blk in range(2):
        for b in range(5):
            p(f"v_cvt_pk_bf16_f32 v{Vbf[blk] + 2 * b}, v{Vv[b][blk]}, v{Vv[b][blk] + 1}")
            p(f"v_cvt_pk_bf16_f32 v{Vbf[blk] + 2 * b + 1}, v{Vv[b][blk] + 2}, v{Vv[b][blk] + 3}")

    mC = Q[0][0]
    mP = Q[0][1]
    mP1 = K[0][1]
    vBig = vT0
    p(f"v_mov_b32 v{vBig}, {fx(BIG)}")
    p(f"v_lshlrev_b32 v{vT1}, 2, v{vG}")
    p(f"v_sub_u32 v{vT1}, v{vJ}, v{vT1}")
    for r in range(4):
        p(f"v_subrev_u32 v{vT2}, {r}, v{vT1}")
        p(f"v_cmp_ge_u32 vcc, 7, v{vT2}")
        p(f"v_cndmask_b32 v{mC + r}, v{vBig}, 0, vcc" if False else f"v_cndmask_b32 v{mC + r}, v{vBig}, v{vC}, vcc")
        p(f"v_cmp_ge_i32 vcc, -9, v{vT2}")
        p(f"v_cndmask_b32 v{mP + r}, v{vBig}, v{vC}, vcc")
    p(f"s_cmp_eq_u32 s{S_MT}, 0")
    p(f"s_cselect_b32 s{sBig0}, {fx(BIG)}, 0")
    for r in range(4):
        p(f"v_add_f32 v{mP1 + r}, s{sBig0}, v{mP + r}")

    for b in range(1, 5):
        mp = mP1 if b == 1 else mP
        for r in range(4):
            p(f"v_fma_f32 v{Sp[b] + r}, v{Sp[b] + r}, v{rsrow[b - 1] + r}, v{mp + r}")
        for r in range(4):
            p(f"v_fma_f32 v{Sc[b] + r}, v{Sc[b] + r}, v{rsrow[b] + r}, v{mC + r}")
    mx = [None] + [dsel[b] for b in range(1, 5)]
    tmp = [None] + [V.get() for b in range(1, 5)]
    for b in range(1, 5):
        p(f"v_max3_f32 v{mx[b]}, v{Sp[b]}, v{Sp[b] + 1}, v{Sp[b] + 2}")
    for b in range(1, 5):
        p(f"v_max3_f32 v{mx[b]}, v{mx[b]}, v{Sp[b] + 3}, v{Sc[b]}")
    for b in range(1, 5):
        p(f"v_max3_f32 v{mx[b]}, v{mx[b]}, v{Sc[b] + 1}, v{Sc[b] + 2}")
    for b in range(1, 5):
        p(f"v_max_f32 v{mx[b]}, v{mx[b]}, v{Sc[b] + 3}")

    def xreduce(op):
        for sw in ("v_permlane16_swap_b32", "v_permlane32_swap_b32"):
            for b in range(1, 5):
                p(f"v_mov_b32 v{tmp[b]}, v{mx[b]}")
            for b in range(1, 5):
                p(f"{sw} v{mx[b]}, v{tmp[b]}")
            for b in range(1, 5):
                p(f"{op} v{mx[b]}, v{mx[b]}, v{tmp[b]}")
    xreduce("v_max_f32")
    fq = [None] + [rs[b] for b in range(1, 5)]
    for b in range(1, 5):
        p(f"v_mul_f32 v{fq[b]}, {fx(28 ** -0.5 * LOG2E)}, v{rs[b]}")
    for b in range(1, 5):
        p(f"v_mul_f32 v{mx[b]}, v{mx[b]}, v{fq[b]}")
    for b in range(1, 5):
        for r in range(4):
            p(f"v_fma_f32 v{Sp[b] + r}, v{Sp[b] + r}, v{fq[b]}, -v{mx[b]}")
            p(f"v_fma_f32 v{Sc[b] + r}, v{Sc[b] + r}, v{fq[b]}, -v{mx[b]}")
    for b in range(1, 5):
        for r in range(4):
            p(f"v_exp_f32 v{Sp[b] + r}, v{Sp[b] + r}")
            p(f"v_exp_f32 v{Sc[b] + r}, v{Sc[b] + r}")
    for b in range(1, 5):
        p(f"v_add_f32 v{mx[b]}, v{Sp[b]}, v{Sp[b] + 1}")
    for r in (2, 3):
        for b in range(1, 5):
            p(f"v_add_f32 v{mx[b]}, v{mx[b]}, v{Sp[b] + r}")
    for r in range(4):
        for b in range(1, 5):
            p(f"v_add_f32 v{mx[b]}, v{mx[b]}, v{Sc[b] + r}")
    for b in range(1, 5):
        for r in range(4):
            p(f"v_mul_f32 v{Sp[b] + r}, v{Sp[b] + r}, v{rsrow[b - 1] + r}")
            p(f"v_mul_f32 v{Sc[b] + r}, v{Sc[b] + r}, v{rsrow[b] + r}")
    for b in range(1, 5):
        pack(Sp[b], Sp[b], Sc[b])
    O = [None] + [[Vv[b][0], Vv[b][1]] for b in range(1, 5)]
    for b in range(1, 5):
        for blk in range(2):
            a0 = Vbf[blk] + 2 * (b - 1)
            p(f"v_mfma_f32_16x16x32_bf16 v[{O[b][blk]}:{O[b][blk] + 3}], v[{a0}:{a0 + 3}], v[{Sp[b]}:{Sp[b] + 3}], 0")
    xreduce("v_add_f32")
    for b in range(1, 5):
        p(f"v_rcp_f32 v{mx[b]}, v{mx[b]}")
    for b in range(1, 5):
        p(f"v_mul_f32 v{mx[b]}, {fx(LN2)}, v{mx[b]}")
    p(f"v_cmp_eq_u32 vcc, 3, v{vG}")
    for b in range(1, 5):
        p(f"v_cndmask_b32 v{tmp[b]}, v{mx[b]}, v{vC}, vcc")
    for b in range(1, 5):
        for r in range(4):
            p(f"v_mul_f32 v{O[b][0] + r}, v{O[b][0] + r}, v{mx[b]}")
            p(f"v_mul_f32 v{O[b][1] + r}, v{O[b][1] + r}, v{tmp[b]}")
    p(f"s_lshl_b32 s49, s{S_MT}, 17")
    p(f"s_lshl_b32 s50, s{S_CG}, 1")
    p(f"s_add_u32 s50, s50, s{sHH}")
    p(f"s_lshl_b32 s50, s50, 12")
    p(f"s_add_u32 s49, s49, s50")
    p(f"s_lshl_b32 s50, s{sP}, 11")
    p(f"s_add_u32 s49, s49, s50")
    p(f"s_add_u32 s{sOb}, s49, {O_OFF}")
    vL16 = vXH[0]
    p(f"v_lshlrev_b32 v{vL16}, 4, v0")
    for b in range(1, 5):
        pack(O[b][0], O[b][0], O[b][1])
        p(f"s_add_u32 s{sT}, s{sOb}, {((b - 1) >> 1) * 65536 + ((b - 1) & 1) * 1024}")
        p(f"buffer_store_dwordx4 v[{O[b][0]}:{O[b][0] + 3}], v{vL16}, s[{SRD_WS}:{SRD_WS + 3}], s{sT} offen {store_mods}", tag="st")
    print("attn VGPRs used:", V.n, "AGPRs:", A.n)
    return p
```

```python
from asmlib import *

NAME = "recurrent_scan__sliding_local_dilated__dense_activation_mish__prompt"

S_TOK, D, F = 2048, 448, 1792
X_BYTES = S_TOK * D * 2
WQKV_BYTES = D * 3 * D * 2
WO_BYTES = D * D * 2
W1_BYTES = D * F * 2
B1_BYTES = F * 2
W2_BYTES = F * D * 2
OUT_BYTES = S_TOK * D * 2

ACT_OFF = 0
ACT_BYTES = 64 * 112 * 1024
O_OFF = ACT_BYTES
O_BYTES = 32 * 16 * 4 * 1024
WS_USED = ACT_OFF + ACT_BYTES + O_BYTES

LOG2E = 1.4426950408889634
LN2 = 0.6931471805599453

import struct


def f32(x):
    return struct.unpack('<I', struct.pack('<f', x))[0]


def hx(x):
    return hex(x & 0xffffffff)


def fx(x):
    return hex(f32(x))


def vr(a, n=1):
    return f"v{a}" if n == 1 else f"v[{a}:{a + n - 1}]"


def ar(a, n=1):
    return f"a{a}" if n == 1 else f"a[{a}:{a + n - 1}]"


def sr(a, n=1):
    return f"s{a}" if n == 1 else f"s[{a}:{a + n - 1}]"


SRD_X = 4
SRD_W = 8
SRD_WS = 12
SRD_W2 = 16
SRD_WO = 20
SRD_OUT = 24
SRD_AUX = 28
S_WAVE = 32
S_MT = 33
S_CG = 34
S_RT = 35
S_CT = 36
S_DBG = 38
S_T0 = 40
S_M = 60


def srd(p, base, ptr, nbytes):
    p(f"s_mov_b32 s{base}, s{ptr}")
    p(f"s_mov_b32 s{base + 1}, s{ptr + 1}")
    p(f"s_mov_b32 s{base + 2}, {hx(nbytes)}")
    p(f"s_mov_b32 s{base + 3}, 0x20000")


def mask64(pred):
    m = 0
    for l in range(64):
        if pred(l):
            m |= 1 << l
    return m


def set_mask(p, sreg, m):
    p(f"s_mov_b32 s{sreg}, {hx(m & 0xffffffff)}")
    p(f"s_mov_b32 s{sreg + 1}, {hx(m >> 32)}")


def set_exec(p, m):
    p(f"s_mov_b32 exec_lo, {hx(m & 0xffffffff)}")
    p(f"s_mov_b32 exec_hi, {hx(m >> 32)}")


class VAlloc:
    def __init__(self, start, end, kind='v'):
        self.n = start
        self.end = end
        self.kind = kind

    def get(self, n=1, align=1):
        self.n = (self.n + align - 1) // align * align
        r = self.n
        self.n += n
        assert self.n <= self.end, f"out of {self.kind} registers ({self.n} > {self.end})"
        return r
```

```python
from common import *

WRING = 0
NSLOT = 7
XRING = NSLOT * 8192
MISC = XRING + 4 * 16384
CSP = MISC
LDS_END = CSP + 2 * 1024


def mlp_role(store_mods="sc1"):
    p = Prog()
    V = VAlloc(1, 256)
    A = VAlloc(0, 256, 'a')
    sXb, sXd, sWb, sWd, sT, sAb, sCol = 40, 41, 42, 43, 47, 44, 45
    sF0, sOdd = 46, 48
    sMcs = 60
    sOnes = 62
    p(f"s_lshl_b32 s49, s{S_MT}, 7")
    p(f"s_lshl_b32 s50, s{S_WAVE}, 5")
    p(f"s_add_u32 s49, s49, s50")
    p(f"s_mul_i32 s{sXb}, s49, 896")
    p(f"s_lshl_b32 s{sXd}, s{S_WAVE}, 12")
    p(f"s_add_u32 s{sXd}, s{sXd}, {XRING}")
    p(f"s_and_b32 s{sOdd}, s{S_CG}, 1")
    p(f"s_mul_i32 s{sF0}, s{S_CG}, 224")
    p(f"s_lshl_b32 s49, s{sF0}, 1")
    p(f"s_lshl_b32 s50, s{sOdd}, 6")
    p(f"s_add_u32 s{sCol}, s49, s50")
    p(f"s_mul_i32 s{sWb}, s{S_WAVE}, {16 * 3584}")
    p(f"s_add_u32 s{sWb}, s{sWb}, s{sCol}")
    p(f"s_lshl_b32 s{sWd}, s{S_WAVE}, 11")
    sHalf = 51
    p(f"s_mul_i32 s50, s{sOdd}, 512")
    p(f"s_sub_u32 s{sHalf}, 384, s50")

    vR, vPos, vT0, vT1, vT2 = V.get(), V.get(), V.get(), V.get(), V.get()
    vXd = [V.get(), V.get()]
    vWd = V.get()
    p(f"v_lshrrev_b32 v{vR}, 3, v0")
    p(f"v_and_b32 v{vPos}, 7, v0")
    p(f"v_lshrrev_b32 v{vT0}, 1, v{vR}")
    p(f"v_xor_b32 v{vT1}, v{vT0}, v{vPos}")
    p(f"v_lshlrev_b32 v{vT1}, 4, v{vT1}")
    p(f"v_mul_u32_u24 v{vT2}, 896, v{vR}")
    p(f"v_add_u32 v{vXd[0]}, v{vT2}, v{vT1}")
    p(f"v_xor_b32 v{vT1}, 64, v{vT1}")
    p(f"v_add_u32 v{vXd[1]}, v{vT2}, v{vT1}")
    p(f"v_and_b32 v{vT0}, 1, v{vT0}")
    p(f"v_lshlrev_b32 v{vT0}, 2, v{vT0}")
    p(f"v_xor_b32 v{vT0}, v{vT0}, v{vPos}")
    p(f"v_lshlrev_b32 v{vT0}, 4, v{vT0}")
    p(f"v_mul_u32_u24 v{vT2}, 3584, v{vR}")
    p(f"v_add_u32 v{vWd}, v{vT2}, v{vT0}")

    def dma_x(kc):
        gs = []
        for n in range(4):
            g = Prog()
            g(f"s_add_u32 s{sT}, s{sXb}, {8 * n * 896 + 128 * kc}")
            g(f"s_add_u32 m0, s{sXd}, {(kc % 4) * 16384 + n * 1024}")
            g(f"buffer_load_dwordx4 v{vXd[n & 1]}, s[{SRD_X}:{SRD_X + 3}], s{sT} offen lds", tag=f"x{kc}")
            gs.append(g.ins)
        return gs

    def dma_w(n):
        cc, kc = divmod(n, 7)
        gs = []
        for i in range(2):
            g = Prog()
            if cc < 3:
                g(f"s_add_u32 s{sT}, s{sWb}, {(64 * kc + 8 * i) * 3584 + 128 * cc}")
            else:
                g(f"s_add_u32 s{sT}, s{sWb}, s{sHalf}")
                g(f"s_add_u32 s{sT}, s{sT}, {(64 * kc + 8 * i) * 3584}")
            g(f"s_add_u32 m0, s{sWd}, {WRING + (n % NSLOT) * 8192 + i * 1024}")
            g(f"buffer_load_dwordx4 v{vWd}, s[{SRD_W}:{SRD_W + 3}], s{sT} offen lds", tag=f"w{n}")
            gs.append(g.ins)
        return gs

    for kc in range(4):
        for g in dma_x(kc) + dma_w(kc):
            p.extend(g)

    vBias = [V.get() for i in range(7)]
    p(f"v_and_b32 v{vT0}, 31, v0")
    p(f"v_lshlrev_b32 v{vT0}, 1, v{vT0}")
    for i in range(6):
        p(f"s_add_u32 s{sT}, s{sCol}, {64 * i}")
        p(f"buffer_load_ushort v{vBias[i]}, v{vT0}, s[{SRD_AUX}:{SRD_AUX + 3}], s{sT} offen")
    sLast = 52
    p(f"s_lshl_b32 s49, s{sF0}, 1")
    p(f"s_mul_i32 s50, s{sOdd}, 384")
    p(f"s_sub_u32 s50, 384, s50")
    p(f"s_add_u32 s{sLast}, s49, s50")
    p(f"buffer_load_ushort v{vBias[6]}, v{vT0}, s[{SRD_AUX}:{SRD_AUX + 3}], s{sLast} offen")

    vXA = [V.get() for s in range(4)]
    vWA = [[V.get(), V.get()] for s in range(4)]
    vH, vTk = V.get(), V.get()
    p(f"v_lshrrev_b32 v{vH}, 5, v0")
    p(f"v_and_b32 v{vTk}, 31, v0")
    p(f"v_lshrrev_b32 v{vT0}, 1, v{vTk}")
    p(f"v_and_b32 v{vT0}, 7, v{vT0}")
    p(f"v_lshl_add_u32 v{vT1}, v{vTk}, 7, s{sXd}")
    vWl = V.get()
    p(f"v_and_b32 v{vT2}, 15, v0")
    p(f"v_lshrrev_b32 v{vT2}, 2, v{vT2}")
    p(f"v_lshl_add_u32 v{vWl}, v{vH}, 3, v{vT2}")
    p(f"v_lshlrev_b32 v{vWl}, 7, v{vWl}")
    p(f"v_lshrrev_b32 v{vT2}, 1, v{vT2}")
    p(f"v_lshl_or_b32 v{vWl}, v{vT2}, 6, v{vWl}")
    p(f"v_lshrrev_b32 v{vT2}, 4, v0")
    p(f"v_and_b32 v{vT2}, 1, v{vT2}")
    p(f"v_lshl_or_b32 v{vWl}, v{vT2}, 5, v{vWl}")
    p(f"v_and_b32 v{vT2}, 3, v0")
    p(f"v_lshl_or_b32 v{vWl}, v{vT2}, 3, v{vWl}")
    for s in range(4):
        p(f"s_add_u32 s49, s{S_WAVE}, {s}")
        p(f"s_and_b32 s49, s49, 3")
        p(f"s_lshl_b32 s50, s49, 1")
        p(f"v_add_u32 v{vT2}, s50, v{vH}")
        p(f"v_xor_b32 v{vT2}, v{vT2}, v{vT0}")
        p(f"v_lshl_add_u32 v{vXA[s]}, v{vT2}, 4, v{vT1}")
        p(f"s_lshl_b32 s50, s49, 11")
        p(f"v_add_u32 v{vWA[s][0]}, s50, v{vWl}")
        p(f"v_xor_b32 v{vWA[s][1]}, 64, v{vWA[s][0]}")

    xf = [[V.get(4, 4) for s in range(4)] for kc in range(7)]
    acc = [[V.get(16, 4), V.get(16, 4)], [V.get(16, 4), V.get(16, 4)]]
    cs = [A.get(4, 4), A.get(4, 4)]
    wf = [[A.get(4, 4), A.get(4, 4)] for buf in range(2)]
    vSel = A.get(4, 4)
    p(f"v_lshrrev_b32 v{vT2}, 4, v0")
    p(f"v_xor_b32 v{vT2}, v{vT2}, v0")
    p(f"v_and_b32 v{vT2}, 1, v{vT2}")
    p(f"v_cmp_eq_u32 vcc, 0, v{vT2}")
    p(f"v_mov_b32 v{vT0}, 0x3f803f80")
    p(f"v_mov_b32 v{vT1}, 0")
    p(f"v_cndmask_b32 v{vT0}, v{vT1}, v{vT0}, vcc")
    for i in range(4):
        p(f"v_accvgpr_write_b32 a{vSel + i}, v{vT0}")
    p(f"s_mov_b32 s{sOnes}, 0x3f803f80")
    set_mask(p, sMcs, mask64(lambda l: (l & 15) < 2))
    vCsW, vCsR = V.get(), V.get()
    p(f"v_and_b32 v{vT2}, 1, v0")
    p(f"v_lshrrev_b32 v{vCsW}, 4, v0")
    p(f"v_lshlrev_b32 v{vCsW}, 4, v{vCsW}")
    p(f"v_lshl_or_b32 v{vCsW}, v{vT2}, 6, v{vCsW}")
    p(f"s_lshl_b32 s49, s{S_WAVE}, 8")
    p(f"s_add_u32 s49, s49, {CSP}")
    p(f"v_add_u32 v{vCsW}, s49, v{vCsW}")
    p(f"v_lshlrev_b32 v{vCsR}, 2, v{vTk}")
    p(f"v_add_u32 v{vCsR}, {CSP}, v{vCsR}")

    vSum = [V.get(), V.get()]
    vSq = [V.get(), V.get()]
    for r in vSum + vSq:
        p(f"v_mov_b32 v{r}, 0")

    def nblk(cc):
        return 2 if cc < 3 else 1

    def wreads(n, s):
        cc, kc = divmod(n, 7)
        buf = s & 1
        r = []
        for blk in range(nblk(cc)):
            off = WRING + (n % NSLOT) * 8192
            d = wf[buf][blk]
            r.append(Ins(f"ds_read_b64_tr_b16 a[{d}:{d + 1}], v{vWA[s][blk]} offset:{off}"))
            r.append(Ins(f"ds_read_b64_tr_b16 a[{d + 2}:{d + 3}], v{vWA[s][blk]} offset:{off + 512}"))
        return r

    def xreads(kc):
        return [Ins(f"ds_read_b128 v[{xf[kc][s]}:{xf[kc][s] + 3}], v{vXA[s]} offset:{(kc % 4) * 16384}") for s in range(4)]

    def mfmas(n, s):
        cc, kc = divmod(n, 7)
        buf = s & 1
        m = []
        for blk in range(nblk(cc)):
            d = acc[cc & 1][blk]
            c = "0" if (kc == 0 and s == 0) else f"v[{d}:{d + 15}]"
            m.append(Ins(f"v_mfma_f32_32x32x16_bf16 v[{d}:{d + 15}], a[{wf[buf][blk]}:{wf[buf][blk] + 3}], v[{xf[kc][s]}:{xf[kc][s] + 3}], {c}"))
        if s == 0:
            for blk in range(nblk(cc)):
                d = cs[blk]
                c = "0" if kc == 0 else f"a[{d}:{d + 3}]"
                m.append(Ins(f"v_mfma_f32_16x16x32_bf16 a[{d}:{d + 3}], a[{wf[buf][blk]}:{wf[buf][blk] + 3}], a[{vSel}:{vSel + 3}], {c}"))
        return m

    def stats_dots(kc):
        r = []
        for s in range(4):
            for i in range(4):
                x = xf[kc][s] + i
                r.append(Ins(f"v_dot2c_f32_bf16 v{vSum[i & 1]}, s{sOnes}, v{x}"))
                r.append(Ins(f"v_dot2c_f32_bf16 v{vSq[i & 1]}, v{x}, v{x}"))
        return r

    vAt = V.get()
    vBaug = V.get(4, 4)
    vAaug = [V.get(4, 4), V.get(4, 4)]
    vCp = [V.get(4, 4), V.get(4, 4)]
    tm = [V.get(), V.get(), V.get()]

    def stats_finish():
        g = Prog()
        g(f"v_add_f32 v{vSum[0]}, v{vSum[0]}, v{vSum[1]}")
        g(f"v_add_f32 v{vSq[0]}, v{vSq[0]}, v{vSq[1]}")
        g(f"v_mov_b32 v{vSum[1]}, v{vSum[0]}")
        g(f"v_mov_b32 v{vSq[1]}, v{vSq[0]}")
        g(f"v_permlane32_swap_b32 v{vSum[0]}, v{vSum[1]}")
        g(f"v_permlane32_swap_b32 v{vSq[0]}, v{vSq[1]}")
        g(f"v_add_f32 v{vSum[0]}, v{vSum[0]}, v{vSum[1]}")
        g(f"v_add_f32 v{vSq[0]}, v{vSq[0]}, v{vSq[1]}")
        nm, var, sd = vSum[0], vSq[0], vSum[1]
        g(f"v_mul_f32 v{nm}, {fx(-1.0 / 448.0)}, v{nm}")
        g(f"v_mul_f32 v{tm[0]}, v{nm}, v{nm}")
        g(f"v_mul_f32 v{var}, {fx(1.0 / 448.0)}, v{var}")
        g(f"v_sub_f32 v{var}, v{var}, v{tm[0]}")
        g(f"v_max_f32 v{var}, 0, v{var}")
        g(f"v_add_f32 v{var}, {fx(1e-5)}, v{var}")
        g(f"v_rsq_f32 v{vAt}, v{var}")
        g(f"v_mul_f32 v{sd}, v{var}, v{vAt}")
        g(f"v_mul_f32 v{vAt}, {fx(LOG2E)}, v{vAt}")
        g(f"v_cvt_pk_bf16_f32 v{tm[0]}, v{nm}, v{sd}")
        g(f"v_lshlrev_b32 v{tm[1]}, 16, v{tm[0]}")
        g(f"v_and_b32 v{tm[2]}, 0xffff0000, v{tm[0]}")
        g(f"v_sub_f32 v{tm[1]}, v{nm}, v{tm[1]}")
        g(f"v_sub_f32 v{tm[2]}, v{sd}, v{tm[2]}")
        g(f"v_cvt_pk_bf16_f32 v{vBaug}, v{nm}, v{tm[1]}")
        g(f"v_mov_b32 v{vBaug + 1}, v{tm[0]}")
        g(f"v_mov_b32 v{vBaug + 3}, 0")
        g(f"v_cvt_pk_bf16_f32 v{vBaug + 2}, v{tm[2]}, v{vBaug + 3}")
        g(f"v_cmp_gt_u32 vcc, 32, v0")
        for i in range(3):
            g(f"v_cndmask_b32 v{vBaug + i}, v{vBaug + 3}, v{vBaug + i}, vcc")
        for i in range(7):
            g(f"v_lshlrev_b32 v{vBias[i]}, 16, v{vBias[i]}")
        for blk in range(2):
            g(f"v_mov_b32 v{vAaug[blk] + 3}, 0")
        return g.ins

    def cs_write(cc):
        g = Prog()
        g(f"s_mov_b64 exec, s[{sMcs}:{sMcs + 1}]")
        for blk in range(nblk(cc)):
            g(f"ds_write_b128 v{vCsW}, a[{cs[blk]}:{cs[blk] + 3}] offset:{(cc & 1) * 1024 + blk * 128}")
        g("s_mov_b64 exec, -1")
        return g.ins

    def aug(cc):
        g = Prog()
        for blk in range(nblk(cc)):
            for w in range(4):
                g(f"ds_read_b32 v{vCp[blk] + w}, v{vCsR} offset:{(cc & 1) * 1024 + w * 256 + blk * 128}")
        for blk in range(nblk(cc)):
            g(f"v_add_f32 v{vCp[blk]}, v{vCp[blk]}, v{vCp[blk] + 1}")
            g(f"v_add_f32 v{vCp[blk] + 2}, v{vCp[blk] + 2}, v{vCp[blk] + 3}")
        for blk in range(nblk(cc)):
            g(f"v_add_f32 v{vCp[blk]}, v{vCp[blk]}, v{vCp[blk] + 2}")
        for blk in range(nblk(cc)):
            g(f"v_cvt_pk_bf16_f32 v{vAaug[blk]}, v{vCp[blk]}, v{vCp[blk]}")
        for blk in range(nblk(cc)):
            g(f"v_and_b32 v{vCp[blk] + 1}, 0xffff0000, v{vAaug[blk]}")
        for blk in range(nblk(cc)):
            g(f"v_sub_f32 v{vCp[blk] + 1}, v{vCp[blk]}, v{vCp[blk] + 1}")
        for blk in range(nblk(cc)):
            b = vBias[2 * cc + blk]
            g(f"v_cvt_pk_bf16_f32 v{vAaug[blk] + 1}, v{vCp[blk] + 1}, v{b}")
            g(f"v_cvt_pk_bf16_f32 v{vAaug[blk] + 2}, v{b}, v{vAaug[blk] + 3}")
        m = []
        for blk in range(nblk(cc)):
            d = acc[cc & 1][blk]
            m.append(Ins(f"v_mfma_f32_32x32x16_bf16 v[{d}:{d + 15}], v[{vAaug[blk]}:{vAaug[blk] + 3}], v[{vBaug}:{vBaug + 3}], v[{d}:{d + 15}]"))
        return g.ins, m

    NT = 4
    mt_t = [V.get() for i in range(NT)]
    mt_e = [V.get() for i in range(NT)]
    vL16 = V.get()
    p(f"v_lshlrev_b32 v{vL16}, 4, v0")
    p(f"s_lshl_b32 s49, s{S_MT}, 2")
    p(f"s_add_u32 s49, s49, s{S_WAVE}")
    p(f"s_mul_i32 s{sAb}, s49, {112 * 1024}")
    p(f"s_add_u32 s{sAb}, s{sAb}, {ACT_OFF}")
    sAfull, sAhalf = 53, 54
    p(f"s_lshl_b32 s49, s{sCol}, 5")
    p(f"s_add_u32 s{sAfull}, s{sAb}, s49")
    p(f"s_lshl_b32 s49, s{sLast}, 5")
    p(f"s_add_u32 s{sAhalf}, s{sAb}, s49")

    def mish(cc):
        out = []
        for blk in range(nblk(cc)):
            d = acc[cc & 1][blk]
            for q in range(4):
                r0 = d + 4 * q
                g = []
                for i in range(4):
                    g.append(Ins(f"v_mul_f32 v{mt_t[i]}, v{r0 + i}, v{vAt}"))
                for i in range(4):
                    g.append(Ins(f"v_exp_f32 v{mt_e[i]}, v{mt_t[i]}"))
                for i in range(4):
                    g.append(Ins(f"v_add_f32 v{mt_e[i]}, 1.0, v{mt_e[i]}"))
                for i in range(4):
                    g.append(Ins(f"v_fma_f32 v{mt_e[i]}, v{mt_e[i]}, v{mt_e[i]}, 1.0"))
                for i in range(4):
                    g.append(Ins(f"v_rcp_f32 v{mt_e[i]}, v{mt_e[i]}"))
                for i in range(4):
                    g.append(Ins(f"v_fma_f32 v{mt_e[i]}, v{mt_e[i]}, -2.0, 1.0"))
                for i in range(4):
                    g.append(Ins(f"v_mul_f32 v{r0 + i}, v{mt_t[i]}, v{mt_e[i]}"))
                half = q >> 1
                base = d + 8 * half + 2 * (q & 1)
                g.append(Ins(f"v_cvt_pk_bf16_f32 v{base}, v{r0}, v{r0 + 1}"))
                g.append(Ins(f"v_cvt_pk_bf16_f32 v{base + 1}, v{r0 + 2}, v{r0 + 3}"))
                if q & 1:
                    sb = sAfull if cc < 3 else sAhalf
                    step = (4 * cc + 2 * blk + half) if cc < 3 else half
                    g.append(Ins(f"s_add_u32 s{sT + 8}, s{sb}, {step * 1024}"))
                    g.append(Ins(f"buffer_store_dwordx4 v[{d + 8 * half}:{d + 8 * half + 3}], v{vL16}, s[{SRD_WS}:{SRD_WS + 3}], s{sT + 8} offen {store_mods}", tag="st"))
                out += g
        return out

    NP = 28
    next_w = 4
    p.wait_vm("w0")
    p("s_barrier")
    p.extend(xreads(0))
    p.extend(wreads(0, 0))
    pending = []
    for n in range(NP):
        cc, kc = divmod(n, 7)
        for s in range(4):
            main = mfmas(n, s)
            fill = []
            pre = []
            if s < 3:
                fill += wreads(n, s + 1)
                if s == 0 and cc == 0 and kc + 4 < 7:
                    pre.append(Ins("s_waitcnt lgkmcnt(0)"))
                    fill += [x for g in dma_x(kc + 4) for x in [g]]
                if s == 2 and kc == 6:
                    fill += [cs_write(cc)]
            else:
                if n + 1 < NP:
                    w = Prog()
                    w.wait_vm([f"w{n + 1}", f"x{kc + 1}"] if cc == 0 else f"w{n + 1}")
                    w("s_waitcnt lgkmcnt(0)")
                    w("s_barrier")
                    pre += w.ins
                    if cc == 2 and kc == 6:
                        sw = Prog()
                        sw(f"s_lshl_b32 s49, s{sOdd}, 6")
                        for ss in range(4):
                            sw(f"v_xor_b32 v{vWA[ss][0]}, s49, v{vWA[ss][0]}")
                        pre += sw.ins
                    if cc == 0 and kc + 1 < 7:
                        fill += xreads(kc + 1)
                    fill += wreads(n + 1, 0)
                    cnt = 0
                    while next_w < NP and next_w <= n + NSLOT and cnt < 2:
                        fill += dma_w(next_w)
                        next_w += 1
                        cnt += 1
                else:
                    w = Prog()
                    w("s_waitcnt lgkmcnt(0)")
                    w("s_barrier")
                    pre += w.ins
            if cc == 0 and s < 4:
                dots = stats_dots(kc)
                fill += dots[8 * s:8 * s + 8]
            if pending:
                steps_left = (7 - kc) * 4 - s
                take = (len(pending) + steps_left - 1) // steps_left
                fill += pending[:take]
                pending = pending[take:]
            p.extend(pre)
            p.extend(flatten(interleave(main, fill, 0, len(main))))
        if kc == 6:
            p.extend(pending)
            pending = []
            if cc == 0:
                p.extend(stats_finish())
            pre, m = aug(cc)
            p.extend(pre)
            p.extend(m)
            pending = mish(cc)
    p.extend(pending)
    print("mlp VGPRs used:", V.n, "AGPRs:", A.n)
    return p
```

```python
from common import *

RING = 40960
PITCH = 272
NSTEP = 38
ADEPTH = 16
HDEPTH = 8

V_ACC = 4
V_RING = 68
V_WX = 196
V_ADR = 244
V_X = V_RING + 48
vL16, vWd, vWA0, vWA1, vWA2, vWA3, vT0, vT1, vT2, vXo = [V_ADR + i for i in range(10)]

sT, sWb, sRing, sAb, sLim, sXo = 47, 40, 41, 42, 43, 44


def common_setup(p):
    p.comment("phase 2: common addresses")
    p(f"s_mul_i32 s{sRing}, s{S_WAVE}, {RING}")
    p(f"v_lshlrev_b32 v{vL16}, 4, v0")
    p(f"v_lshrrev_b32 v{vT0}, 3, v0")
    p(f"v_mul_u32_u24 v{vT0}, 896, v{vT0}")
    p(f"v_and_b32 v{vT1}, 7, v0")
    p(f"v_lshl_add_u32 v{vXo}, v{vT1}, 4, v{vT0}")
    p(f"s_lshl_b32 s49, s{S_RT}, 6")
    p(f"s_lshl_b32 s50, s{S_WAVE}, 3")
    p(f"s_add_u32 s49, s49, s50")
    p(f"s_mul_i32 s49, s49, 896")
    p(f"s_lshl_b32 s50, s{S_CT}, 7")
    p(f"s_add_u32 s{sXo}, s49, s50")


def x_loads():
    g = Prog()
    for it in range(2):
        g(f"s_add_u32 s{sT}, s{sXo}, {it * 32 * 896}")
        g(f"buffer_load_dwordx4 v[{V_X + 4 * it}:{V_X + 4 * it + 3}], v{vXo}, s[{SRD_X}:{SRD_X + 3}], s{sT} offen")
    return g.ins


def wfrag(j, blk):
    if j < 32:
        a = 8 * j + 4 * blk
        return 'a', a
    return 'v', V_WX + 8 * (j - 32) + 4 * blk


def y_preload(p):
    p.comment("phase 2, y wave: W2 fragments -> registers")
    p(f"v_lshrrev_b32 v{vT0}, 3, v0")
    p(f"v_and_b32 v{vT1}, 7, v0")
    p(f"v_lshrrev_b32 v{vT2}, 1, v{vT0}")
    p(f"v_and_b32 v{vT2}, 1, v{vT2}")
    p(f"v_lshlrev_b32 v{vT2}, 2, v{vT2}")
    p(f"v_xor_b32 v{vT1}, v{vT1}, v{vT2}")
    p(f"v_lshlrev_b32 v{vT1}, 4, v{vT1}")
    p(f"v_mul_u32_u24 v{vT0}, 896, v{vT0}")
    p(f"v_add_u32 v{vWd}, v{vT0}, v{vT1}")
    p(f"s_mul_i32 s{sWb}, s{S_WAVE}, {16 * NSTEP * 896}")
    p(f"s_lshl_b32 s49, s{S_CT}, 7")
    p(f"s_add_u32 s{sWb}, s{sWb}, s49")

    def dma(j):
        for i in range(2):
            p(f"s_add_u32 s{sT}, s{sWb}, {(16 * j + 8 * i) * 896}")
            p(f"s_add_u32 m0, s{sRing}, {(j % 20) * 2048 + i * 1024}")
            p(f"buffer_load_dwordx4 v{vWd}, s[{SRD_W2}:{SRD_W2 + 3}], s{sT} offen lds", tag=f"u{j}")
    for j in range(6):
        dma(j)
    p(f"v_and_b32 v{vT0}, 15, v0")
    p(f"v_lshrrev_b32 v{vT0}, 2, v{vT0}")
    p(f"v_lshrrev_b32 v{vT1}, 5, v0")
    p(f"v_lshl_add_u32 v{vT1}, v{vT1}, 2, v{vT0}")
    p(f"v_lshlrev_b32 v{vT1}, 7, v{vT1}")
    p(f"v_lshrrev_b32 v{vT0}, 1, v{vT0}")
    p(f"v_lshl_or_b32 v{vT1}, v{vT0}, 6, v{vT1}")
    p(f"v_lshrrev_b32 v{vT0}, 4, v0")
    p(f"v_and_b32 v{vT0}, 1, v{vT0}")
    p(f"v_lshl_or_b32 v{vT1}, v{vT0}, 5, v{vT1}")
    p(f"v_and_b32 v{vT0}, 3, v0")
    p(f"v_lshl_or_b32 v{vT1}, v{vT0}, 3, v{vT1}")
    p(f"v_add_u32 v{vWA0}, s{sRing}, v{vT1}")
    p(f"v_xor_b32 v{vT1}, 64, v{vT1}")
    p(f"v_add_u32 v{vWA1}, s{sRing}, v{vT1}")
    for j in range(6, 20):
        dma(j)
    for j in range(NSTEP):
        p.wait_vm(f"u{j}")
        for blk in range(2):
            k, r = wfrag(j, blk)
            va = (vWA0, vWA1)[blk]
            off = (j % 20) * 2048
            p(f"ds_read_b64_tr_b16 {k}[{r}:{r + 1}], v{va} offset:{off}")
            p(f"ds_read_b64_tr_b16 {k}[{r + 2}:{r + 3}], v{va} offset:{off + 1024}")
        if j >= 1 and j - 1 + 20 < NSTEP:
            p("s_waitcnt lgkmcnt(4)")
            dma(j - 1 + 20)
    p("s_waitcnt lgkmcnt(0)")


def y_main(p, load_mods):
    p.comment("phase 2, y wave: main loop")
    p(f"s_mul_i32 s{sAb}, s{S_RT}, {2 * 112 * 1024}")
    p(f"s_mul_i32 s49, s{S_WAVE}, {NSTEP * 1024}")
    p(f"s_add_u32 s{sLim}, s{sAb}, {ACT_OFF + 111 * 1024}")
    p(f"s_add_u32 s{sAb}, s{sAb}, s49")
    p(f"s_add_u32 s{sAb}, s{sAb}, {ACT_OFF}")

    def slot(j, bb):
        return V_RING + 8 * (j % ADEPTH) + 4 * bb

    def loads(j):
        g = Prog()
        g(f"s_add_u32 s{sT}, s{sAb}, {j * 1024}")
        if j >= NSTEP - 2:
            g(f"s_min_u32 s{sT}, s{sT}, s{sLim}")
        g(f"buffer_load_dwordx4 v[{slot(j, 0)}:{slot(j, 0) + 3}], v{vL16}, s[{SRD_WS}:{SRD_WS + 3}], s{sT} offen {load_mods}")
        g(f"s_add_u32 s{sT}, s{sT}, {112 * 1024}")
        g(f"buffer_load_dwordx4 v[{slot(j, 1)}:{slot(j, 1) + 3}], v{vL16}, s[{SRD_WS}:{SRD_WS + 3}], s{sT} offen {load_mods}")
        return g.ins
    for j in range(ADEPTH):
        p.extend(loads(j))
    for j in range(NSTEP):
        for bb in range(2):
            for blk in range(2):
                d = V_ACC + 16 * (2 * blk + bb)
                k, r = wfrag(j, blk)
                c = "0" if j == 0 else f"v[{d}:{d + 15}]"
                p(f"v_mfma_f32_32x32x16_bf16 v[{d}:{d + 15}], {k}[{r}:{r + 3}], v[{slot(j, bb)}:{slot(j, bb) + 3}], {c}")
        if j + ADEPTH < NSTEP:
            p.extend(loads(j + ADEPTH))
        if j == 22:
            p.extend(x_loads())
    p(f"v_and_b32 v{vT0}, 31, v0")
    p(f"v_mul_u32_u24 v{vT0}, {PITCH}, v{vT0}")
    p(f"v_lshrrev_b32 v{vT1}, 5, v0")
    p(f"v_lshl_add_u32 v{vT0}, v{vT1}, 4, v{vT0}")
    p(f"v_add_u32 v{vT0}, s{sRing}, v{vT0}")
    for bb in range(2):
        for blk in range(2):
            d = V_ACC + 16 * (2 * blk + bb)
            for q in range(4):
                p(f"ds_write_b128 v{vT0}, v[{d + 4 * q}:{d + 4 * q + 3}] offset:{bb * 32 * PITCH + (32 * blk + 8 * q) * 4}")


def s_preload(p):
    p.comment("phase 2, s wave: Wo fragments -> registers")
    p(f"v_lshrrev_b32 v{vT0}, 3, v0")
    p(f"v_and_b32 v{vT1}, 7, v0")
    p(f"v_lshrrev_b32 v{vT2}, 1, v{vT0}")
    p(f"v_lshlrev_b32 v{vT2}, 1, v{vT2}")
    p(f"v_xor_b32 v{vT1}, v{vT1}, v{vT2}")
    p(f"v_lshlrev_b32 v{vT1}, 4, v{vT1}")
    p(f"v_mul_u32_u24 v{vT0}, 896, v{vT0}")
    p(f"v_add_u32 v{vWd}, v{vT0}, v{vT1}")
    p(f"s_lshl_b32 s{sWb}, s{S_CT}, 7")

    def dma(row0, ringrow, tag):
        p(f"s_add_u32 s{sT}, s{sWb}, {row0 * 896}")
        p(f"s_add_u32 m0, s{sRing}, {ringrow * 128}")
        p(f"buffer_load_dwordx4 v{vWd}, s[{SRD_WO}:{SRD_WO + 3}], s{sT} offen lds", tag=tag)
    for n in range(8):
        dma(8 * n, 8 * n, f"a{n}")
    va = [vWA0, vWA1, vWA2, vWA3]
    p(f"v_and_b32 v{vT0}, 15, v0")
    p(f"v_lshrrev_b32 v{vT0}, 2, v{vT0}")
    p(f"v_lshrrev_b32 v{vT1}, 4, v0")
    p(f"v_lshl_add_u32 v{vT2}, v{vT1}, 2, v{vT0}")
    p(f"v_lshlrev_b32 v{vT2}, 7, v{vT2}")
    p(f"v_and_b32 v{vT1}, 1, v{vT1}")
    p(f"v_lshrrev_b32 v{vT0}, 1, v{vT0}")
    p(f"v_lshl_or_b32 v{vT0}, v{vT1}, 1, v{vT0}")
    p(f"v_lshl_or_b32 v{vT2}, v{vT0}, 5, v{vT2}")
    p(f"v_and_b32 v{vT0}, 3, v0")
    p(f"v_lshl_or_b32 v{vT2}, v{vT0}, 3, v{vT2}")
    for c in range(4):
        p(f"v_xor_b32 v{vT0}, {32 * c}, v{vT2}")
        p(f"v_add_u32 v{va[c]}, s{sRing}, v{vT0}")
    for n in range(8, 39):
        dma(8 * n, 8 * n, f"a{n}")

    def reads(hd):
        par = (hd if hd <= 10 else hd - 11) & 1
        row = 28 * hd if hd <= 10 else 28 * (hd - 11)
        for cb in range(4):
            r = 16 * hd + 4 * cb
            a = va[cb ^ (2 * par)]
            p(f"ds_read_b64_tr_b16 a[{r}:{r + 1}], v{a} offset:{row * 128}")
            p(f"ds_read_b64_tr_b16 a[{r + 2}:{r + 3}], v{a} offset:{row * 128 + 2048}")
    for hd in range(6):
        p.wait_vm(f"a{(28 * hd + 31) // 8}")
        reads(hd)
    p("s_waitcnt lgkmcnt(0)")
    for n in range(18):
        dma(308 + 8 * n, 8 * n, f"b{n}")
    for hd in range(6, 11):
        p.wait_vm(f"a{(28 * hd + 31) // 8}")
        reads(hd)
    for hd in range(11, 16):
        p.wait_vm(f"b{(28 * (hd - 11) + 31) // 8}")
        reads(hd)
    p("s_waitcnt lgkmcnt(0)")


def s_main(p, load_mods):
    p.comment("phase 2, s wave: main loop")
    p(f"s_lshl_b32 s{sAb}, s{S_RT}, 16")
    p(f"s_add_u32 s{sAb}, s{sAb}, {O_OFF}")

    def slot(hd, tb):
        return V_RING + 16 * (hd % HDEPTH) + 4 * tb

    def loads(hd):
        g = Prog()
        for tb in range(4):
            g(f"s_add_u32 s{sT}, s{sAb}, {(hd * 4 + tb) * 1024}")
            g(f"buffer_load_dwordx4 v[{slot(hd, tb)}:{slot(hd, tb) + 3}], v{vL16}, s[{SRD_WS}:{SRD_WS + 3}], s{sT} offen {load_mods}")
        return g.ins
    for hd in range(HDEPTH):
        p.extend(loads(hd))
    for hd in range(16):
        for tb in range(4):
            for cb in range(4):
                d = V_ACC + 16 * tb + 4 * cb
                r = 16 * hd + 4 * cb
                c = "0" if hd == 0 else f"v[{d}:{d + 3}]"
                p(f"v_mfma_f32_16x16x32_bf16 v[{d}:{d + 3}], a[{r}:{r + 3}], v[{slot(hd, tb)}:{slot(hd, tb) + 3}], {c}")
        if hd + HDEPTH < 16:
            p.extend(loads(hd + HDEPTH))
        if hd == 11:
            p.extend(x_loads())
    p(f"v_and_b32 v{vT0}, 15, v0")
    p(f"v_mul_u32_u24 v{vT0}, {PITCH}, v{vT0}")
    p(f"v_lshrrev_b32 v{vT1}, 4, v0")
    p(f"v_lshl_add_u32 v{vT0}, v{vT1}, 4, v{vT0}")
    p(f"v_add_u32 v{vT0}, s{sRing}, v{vT0}")
    for tb in range(4):
        for cb in range(4):
            d = V_ACC + 16 * tb + 4 * cb
            p(f"ds_write_b128 v{vT0}, v[{d}:{d + 3}] offset:{tb * 16 * PITCH + cb * 64}")


def epilogue(p):
    p.comment("phase 2 epilogue")
    vY, vS = vWA0, vWA1
    p(f"v_lshrrev_b32 v{vT0}, 3, v0")
    p(f"s_lshl_b32 s49, s{S_WAVE}, 3")
    p(f"v_add_u32 v{vT0}, s49, v{vT0}")
    p(f"v_and_b32 v{vT1}, 7, v0")
    p(f"v_lshlrev_b32 v{vT1}, 5, v{vT1}")
    p(f"v_mul_u32_u24 v{vY}, {PITCH}, v{vT0}")
    p(f"v_add_u32 v{vY}, v{vY}, v{vT1}")
    p(f"v_and_b32 v{vT2}, 1, v{vT0}")
    p(f"v_lshlrev_b32 v{vT2}, 5, v{vT2}")
    p(f"v_lshrrev_b32 v{vT0}, 1, v{vT0}")
    p(f"v_add_u32 v{vT0}, v{vT0}, v{vT2}")
    p(f"v_mul_u32_u24 v{vS}, {PITCH}, v{vT0}")
    p(f"v_add_u32 v{vS}, v{vS}, v{vT1}")
    p(f"v_add_u32 v{vS}, {3 * RING}, v{vS}")
    p(f"v_add_u32 v{vT2}, {2 * RING}, v{vY}")
    p("s_waitcnt lgkmcnt(0)")
    p("s_barrier")
    base = V_ACC
    for it in range(2):
        b = base + 32 * it
        for half in range(2):
            p(f"ds_read_b128 v[{b + 4 * half}:{b + 4 * half + 3}], v{vY} offset:{it * 32 * PITCH + 16 * half}")
            p(f"ds_read_b128 v[{b + 8 + 4 * half}:{b + 8 + 4 * half + 3}], v{vY} offset:{RING + it * 32 * PITCH + 16 * half}")
            p(f"ds_read_b128 v[{b + 16 + 4 * half}:{b + 16 + 4 * half + 3}], v{vT2} offset:{it * 32 * PITCH + 16 * half}")
            p(f"ds_read_b128 v[{b + 24 + 4 * half}:{b + 24 + 4 * half + 3}], v{vS} offset:{it * 16 * PITCH + 16 * half}")
    for it in range(2):
        b = base + 32 * it
        for i in range(8):
            p(f"v_add_f32 v{b + i}, v{b + i}, v{b + 8 + i}")
        for i in range(8):
            p(f"v_add_f32 v{b + i}, v{b + i}, v{b + 16 + i}")
        for i in range(8):
            p(f"v_exp_f32 v{b + 8 + i}, -v{b + i}")
        for i in range(8):
            p(f"v_add_f32 v{b + 8 + i}, 1.0, v{b + 8 + i}")
        for i in range(8):
            p(f"v_rcp_f32 v{b + 8 + i}, v{b + 8 + i}")
        for i in range(8):
            p(f"v_mul_f32 v{b + i}, v{b + i}, v{b + 24 + i}")
        xr = V_X + 4 * it
        for i in range(4):
            p(f"v_lshlrev_b32 v{b + 16 + 2 * i}, 16, v{xr + i}")
            p(f"v_and_b32 v{b + 17 + 2 * i}, 0xffff0000, v{xr + i}")
        for i in range(8):
            p(f"v_fma_f32 v{b + i}, v{b + i}, v{b + 8 + i}, v{b + 16 + i}")
        for i in range(4):
            p(f"v_cvt_pk_bf16_f32 v{b + 16 + i}, v{b + 2 * i}, v{b + 2 * i + 1}")
        p(f"s_add_u32 s{sT}, s{sXo}, {it * 32 * 896}")
        p(f"buffer_store_dwordx4 v[{b + 16}:{b + 19}], v{vXo}, s[{SRD_OUT}:{SRD_OUT + 3}], s{sT} offen")


def p2_parts(load_mods="sc1"):
    c, yp, sp, ym, sm, ep = Prog(), Prog(), Prog(), Prog(), Prog(), Prog()
    common_setup(c)
    y_preload(yp)
    s_preload(sp)
    y_main(ym, load_mods)
    s_main(sm, load_mods)
    epilogue(ep)
    return c, yp, sp, ym, sm, ep
```

```python
import sys, os
sys.path.insert(0, os.path.dirname(os.path.abspath(__file__)))
from common import *
from attn import attn_role
from mlp import mlp_role
import p2 as P2

HEADER = open("cdna_kernels/" + NAME + ".s.ref").read().split("; Override launch")[0]
LDS = 163840
P_X, P_WQKV, P_WO, P_W1, P_B1, P_W2, P_OUT, P_DBG, P_WS = 64, 66, 68, 72, 74, 76, 78, 80, 82


def fin(p):
    return render(finalize(p))


def prologue(p, end_label):
    p(f"s_cmp_ge_u32 s2, 256")
    p(f"s_cbranch_scc1 {end_label}")
    p("s_load_dwordx16 s[64:79], s[0:1], 0")
    p("s_load_dwordx4 s[80:83], s[0:1], 64")
    p("v_lshrrev_b32 v1, 6, v0")
    p("v_and_b32 v0, 63, v0")
    p(f"v_readfirstlane_b32 s{S_WAVE}, v1")
    p("s_and_b32 s40, s2, 7")
    p("s_lshr_b32 s41, s2, 3")
    p("s_and_b32 s42, s40, 1")
    p("s_lshl_b32 s42, s42, 3")
    p("s_and_b32 s43, s41, 7")
    p(f"s_add_u32 s{S_MT}, s42, s43")
    p("s_lshr_b32 s37, s41, 3")
    p("s_lshr_b32 s42, s40, 1")
    p("s_lshl_b32 s43, s42, 1")
    p("s_and_b32 s44, s37, 1")
    p("s_cmp_eq_u32 s42, 3")
    p("s_cselect_b32 s45, 1, 0")
    p("s_lshr_b32 s46, s37, 1")
    p("s_and_b32 s45, s45, s46")
    p("s_xor_b32 s44, s44, s45")
    p(f"s_add_u32 s{S_CG}, s43, s44")
    p("s_mul_i32 s42, s41, 37")
    p("s_lshr_b32 s42, s42, 8")
    p("s_lshl_b32 s43, s40, 2")
    p(f"s_add_u32 s{S_RT}, s43, s42")
    p("s_mul_i32 s42, s42, 7")
    p(f"s_sub_u32 s{S_CT}, s41, s42")
    p("s_mov_b32 s3, s41")
    p("s_waitcnt lgkmcnt(0)")
    srd(p, SRD_X, P_X, X_BYTES)
    srd(p, SRD_WS, P_WS, WS_USED)
    srd(p, SRD_W2, P_W2, W2_BYTES)
    srd(p, SRD_WO, P_WO, WO_BYTES)
    srd(p, SRD_OUT, P_OUT, OUT_BYTES)
    p(f"s_mov_b32 s{S_DBG}, s{P_DBG}")
    p(f"s_mov_b32 s{S_DBG + 1}, s{P_DBG + 1}")


def phase1(tag, store_mods):
    t = ""
    p = Prog()
    p("s_cmp_ge_u32 s37, 2")
    p(f"s_cbranch_scc1 L_{tag}_attn")
    srd(p, SRD_W, P_W1, W1_BYTES)
    srd(p, SRD_AUX, P_B1, B1_BYTES)
    t += fin(p)
    m = mlp_role(store_mods)
    m("s_waitcnt vmcnt(0) lgkmcnt(0)")
    m(f"s_branch L_{tag}_p1done")
    t += fin(m)
    p = Prog()
    p.label(f"L_{tag}_attn")
    srd(p, SRD_W, P_WQKV, WQKV_BYTES)
    t += fin(p)
    a = attn_role(store_mods)
    a("s_waitcnt vmcnt(0) lgkmcnt(0)")
    t += fin(a)
    t += f"L_{tag}_p1done:\n"
    return t


def phase2(tag, load_mods, sync=None):
    c, yp, sp, ym, sm, ep = P2.p2_parts(load_mods)
    t = fin(c)
    p = Prog()
    p(f"s_cmp_eq_u32 s{S_WAVE}, 3")
    p(f"s_cbranch_scc1 L_{tag}_spre")
    t += fin(p)
    if sync is None:
        yp.extend(ym)
        yp("s_waitcnt vmcnt(0) lgkmcnt(0)")
        yp(f"s_branch L_{tag}_epi")
        t += fin(yp)
        t += f"L_{tag}_spre:\n"
        sp.extend(sm)
        sp("s_waitcnt vmcnt(0) lgkmcnt(0)")
        t += fin(sp)
    else:
        yp.extend(sync(tag, False))
        yp.extend(ym)
        yp("s_waitcnt vmcnt(0) lgkmcnt(0)")
        yp(f"s_branch L_{tag}_epi")
        t += fin(yp)
        t += f"L_{tag}_spre:\n"
        t += fin(sp)
        t += sync(tag, True)
        sm("s_waitcnt vmcnt(0) lgkmcnt(0)")
        t += fin(sm)
    t += f"L_{tag}_epi:\n"
    t += fin(ep)
    return t


def gen_split():
    k1, k2 = "rs_p1_kernel", "rs_p2_kernel"
    p = Prog()
    prologue(p, "L_a_end")
    b1 = fin(p) + phase1("a", "") + "L_a_end:\n\ts_endpgm\n"
    p = Prog()
    prologue(p, "L_b_end")
    p("s_cmp_ge_u32 s3, 28")
    p("s_cbranch_scc1 L_b_end")
    b2 = fin(p) + phase2("b", "") + "L_b_end:\n\ts_endpgm\n"
    txt = HEADER
    txt += f"; @launch kernel={k1} grid=(256,1,1) block=(256,1,1) lds={LDS}\n"
    txt += f"; @launch kernel={k2} grid=(256,1,1) block=(256,1,1) lds={LDS}\n"
    txt += '.amdgcn_target "amdgcn-amd-amdhsa--gfx950"\n.text\n'
    txt += kernel_block(k1, b1) + kernel_block(k2, b2)
    txt += '.section .rodata,"a"\n.p2align 6\n' + kernel_desc(k1) + ".p2align 6\n" + kernel_desc(k2)
    return txt


if __name__ == "__main__":
    mode = sys.argv[1] if len(sys.argv) > 1 else "split"
    out = sys.argv[2] if len(sys.argv) > 2 else "out_split.s"
    txt = {"split": gen_split}[mode]()
    open(out, "w").write(txt)
    print("wrote", out, len(txt), "bytes")
```
